```python
import torch

def _softmax(x, axis=-1):
    return torch.softmax(x, dim=axis)
def _gelu(x):
    return torch.nn.functional.gelu(x, approximate="tanh")
def _silu(x):
    return torch.nn.functional.silu(x)
def _sigmoid(x):
    return torch.sigmoid(x)
def _layernorm(x, axis=-1, eps=1e-5):
    m = x.mean(dim=axis, keepdim=True)
    v = x.var(dim=axis, keepdim=True, unbiased=False)
    return (x - m) / torch.sqrt(v + eps)
def _scatter_add(tgt, idx, src, axis=0):
    return tgt.clone().index_add_(axis, idx, src)
def _segment_sum(src, seg, n):
    out = torch.zeros((n,) + src.shape[1:], dtype=src.dtype)
    return out.index_add_(0, seg, src)
def _pad(x, pw):
    flat = tuple(v for pair in reversed(pw) for v in pair)
    return torch.nn.functional.pad(x, flat)

kernel_name = 'sequential_preLN__grouped_kv_mqa__geglu_ffn__prompt'

def setup_inputs():

    _w = (lambda a: (lambda t: t.to(torch.bfloat16) if t.is_floating_point() else t)(torch.as_tensor(a)))
    def _A_setup():
        B, S, D, H = 1, 2048, 448, 16
        Dh = D // H
        return {
            "x": _w((lambda *s: torch.randn(*s, dtype=torch.bfloat16) * 0.05)(B, S, D)),
            "wq": _w((lambda *s: torch.randn(*s, dtype=torch.bfloat16) * 0.05)(D, H * Dh)),
            "wk": _w((lambda *s: torch.randn(*s, dtype=torch.bfloat16) * 0.05)(D, Dh)),
            "wv": _w((lambda *s: torch.randn(*s, dtype=torch.bfloat16) * 0.05)(D, Dh)),
            "wo": _w((lambda *s: torch.randn(*s, dtype=torch.bfloat16) * 0.05)(H * Dh, D)),
        }
    _A_in = _A_setup()

    def _B_setup():
        B, S, D, F = 1, 2048, 448, 1792
        return {
            "x": _w((lambda *s: torch.randn(*s, dtype=torch.bfloat16) * 0.05)(B, S, D)),
            "w_gate": _w((lambda *s: torch.randn(*s, dtype=torch.bfloat16) * 0.05)(D, F)),
            "w_up": _w((lambda *s: torch.randn(*s, dtype=torch.bfloat16) * 0.05)(D, F)),
            "w_down": _w((lambda *s: torch.randn(*s, dtype=torch.bfloat16) * 0.05)(F, D)),
        }
    _B_in = _B_setup()

    return {
        "A_x": _A_in["x"],
        "A_wq": _A_in["wq"],
        "A_wk": _A_in["wk"],
        "A_wv": _A_in["wv"],
        "A_wo": _A_in["wo"],
        "B_x": _B_in["x"],
        "B_w_gate": _B_in["w_gate"],
        "B_w_up": _B_in["w_up"],
        "B_w_down": _B_in["w_down"],
    }

def reference(A_x, A_wq, A_wk, A_wv, A_wo, B_x, B_w_gate, B_w_up, B_w_down):
    def _A_ref(x, wq, wk, wv, wo):
        B, S, D = x.shape
        H = 16
        Dh = D // H
        q = (lambda x, *d: x.permute(*d))((x @ wq).reshape(B, S, H, Dh), 0, 2, 1, 3)
        k = x @ wk
        v = x @ wv
        scores = torch.einsum("bhqd,bkd->bhqk", q, k) * (Dh ** -0.5)
        p = _softmax(scores, axis=-1)
        o = torch.einsum("bhqk,bkd->bhqd", p, v)
        return (lambda x, *d: x.permute(*d))(o, 0, 2, 1, 3).reshape(B, S, H * Dh) @ wo

    def _B_ref(x, w_gate, w_up, w_down):
        return (_gelu(x @ w_gate) * (x @ w_up)) @ w_down

    x = A_x
    h = x + _A_ref(_layernorm(x, axis=-1), A_wq, A_wk, A_wv, A_wo)
    h2 = h + _B_ref(_layernorm(h, axis=-1), B_w_gate, B_w_up, B_w_down)
    return h2
```

```python
class Asm:
    def __init__(self):
        self.L = []
        self.nlab = 0

    def __call__(self, s):
        for line in s.split("\n"):
            line = line.strip()
            if line:
                self.L.append(line)

    def label(self, base="L"):
        self.nlab += 1
        return f"{base}_{self.nlab}"

    def text(self):
        out = []
        for l in self.L:
            if l.endswith(":") or l.startswith(".") or l.startswith(";"):
                out.append(l)
            else:
                out.append("    " + l)
        return "\n".join(out) + "\n"


def kernel_begin(A, name):
    A(f".globl {name}\n.p2align 8\n.type {name},@function\n{name}:")


def kernel_desc(name, nv, na=0, ns=102, kernarg=96):
    acc = (nv + 3) // 4 * 4
    total = acc + na if na else nv
    return (f".amdhsa_kernel {name}\n"
            f"  .amdhsa_next_free_vgpr {total}\n"
            f"  .amdhsa_next_free_sgpr {ns}\n"
            f"  .amdhsa_accum_offset {acc}\n"
            f"  .amdhsa_group_segment_fixed_size 0\n"
            f"  .amdhsa_kernarg_size {kernarg}\n"
            f"  .amdhsa_user_sgpr_count 2\n"
            f"  .amdhsa_user_sgpr_kernarg_segment_ptr 1\n"
            f"  .amdhsa_system_sgpr_workgroup_id_x 1\n"
            f".end_amdhsa_kernel\n")


def srd(A, dst, base, nbytes):
    A(f"s_mov_b32 s{dst}, s{base}")
    A(f"s_and_b32 s{dst+1}, s{base+1}, 0xffff")
    A(f"s_mov_b32 s{dst+2}, {nbytes}")
    A(f"s_mov_b32 s{dst+3}, 0x20000")
```

```python
import re

REG = re.compile(r"^(-|\||-\|)?([vas])(\d+)\|?$")
RNG = re.compile(r"^(-|abs\()?([vas])\[(\d+):(\d+)\]\)?$")
TRANS = ("v_exp_", "v_log_", "v_rcp_", "v_rsq_", "v_sqrt_", "v_sin_", "v_cos_")


def regs_of(op):
    op = op.strip()
    m = REG.match(op)
    if m:
        return [(m.group(2), int(m.group(3)))]
    m = RNG.match(op)
    if m:
        return [(m.group(2), i) for i in range(int(m.group(3)), int(m.group(4)) + 1)]
    if op == "vcc":
        return [("x", "vcc")]
    if op in ("vcc_lo", "vcc_hi"):
        return [("x", "vcc")]
    if op in ("exec", "exec_lo", "exec_hi"):
        return [("x", "exec")]
    if op == "m0":
        return [("x", "m0")]
    return []


class Ins:
    def __init__(self, text):
        self.text = text
        t = text.split(";")[0].strip()
        parts = t.split(None, 1)
        self.mn = parts[0]
        rest = parts[1] if len(parts) > 1 else ""
        ops = [o.strip() for o in rest.split(",")] if rest else []
        mods = []
        if ops:
            last = ops[-1].split()
            ops[-1] = last[0]
            mods = last[1:]
        self.ops, self.mods = ops, mods
        mn = self.mn
        self.kind = "other"
        self.w, self.r = [], []
        self.A = self.B = self.C = self.D = []
        self.passes = 0
        self.data = []
        R = regs_of
        if mn.startswith("v_mfma") or mn.startswith("v_smfmac"):
            self.kind = "mfma"
            self.passes = 8 if "32x32" in mn else 4
            self.D = R(ops[0]); self.A = R(ops[1]); self.B = R(ops[2])
            if mn.startswith("v_smfmac"):
                self.C = self.D
                self.B = self.B + R(ops[3])
            else:
                self.C = R(ops[3])
            self.w = self.D
            self.r = self.A + self.B + self.C
        elif mn.startswith("v_"):
            self.kind = "valu"
            if mn.startswith("v_permlane") and "swap" in mn:
                self.w = R(ops[0]) + R(ops[1]); self.r = list(self.w)
            elif mn.startswith(("v_add_co", "v_sub_co", "v_addc_co", "v_subb_co", "v_mad_u64", "v_div_scale")):
                self.w = R(ops[0]) + R(ops[1])
                self.r = sum((R(o) for o in ops[2:]), [])
            elif mn == "v_nop":
                pass
            else:
                self.w = R(ops[0])
                self.r = sum((R(o) for o in ops[1:]), [])
                if mn.startswith(("v_fmac", "v_dot2c", "v_writelane")) or "dpp" in mn or "sdwa" in mn:
                    self.r = self.r + self.w
                if mn.startswith("v_cmpx"):
                    self.w = self.w + [("x", "exec")]
        elif mn.startswith("ds_"):
            self.kind = "ds"
            if mn.startswith(("ds_read", "ds_bpermute", "ds_permute", "ds_swizzle")):
                self.w = R(ops[0]); self.r = sum((R(o) for o in ops[1:]), [])
            else:
                self.r = sum((R(o) for o in ops), [])
        elif mn.startswith(("global_", "buffer_")):
            self.kind = "vmem"
            if mn in ("buffer_wbl2", "buffer_inv"):
                pass
            elif "lds" in mn or "lds" in mods:
                self.r = sum((R(o) for o in ops), []) + [("x", "m0")]
                self.dma = True
            elif "load" in mn:
                self.w = R(ops[0]); self.r = sum((R(o) for o in ops[1:]), [])
            elif "atomic" in mn and "sc0" in mods and mn.startswith("global_"):
                self.w = R(ops[0]); self.r = sum((R(o) for o in ops[1:]), [])
            else:
                self.r = sum((R(o) for o in ops), [])
                self.data = R(ops[1]) if mn.startswith("global_") else R(ops[0])
        elif mn.startswith(("s_load", "s_memtime", "s_memrealtime")):
            self.kind = "smem"
            self.w = R(ops[0]); self.r = sum((R(o) for o in ops[1:]), [])
        elif mn.startswith("s_"):
            self.kind = "salu"
            if mn.startswith(("s_cmp", "s_bitcmp", "s_waitcnt", "s_nop", "s_barrier", "s_branch", "s_cbranch", "s_endpgm",
                              "s_sleep", "s_setprio", "s_setpc")):
                self.r = sum((R(o) for o in ops), [])
            else:
                self.w = R(ops[0]); self.r = sum((R(o) for o in ops[1:]), [])
                if "saveexec" in mn:
                    self.w = self.w + [("x", "exec")]
        self.trans = mn.startswith(TRANS)
        self.dl = mn.startswith("v_dot")
        self.states = 1
        if mn == "s_nop":
            self.states = int(ops[0], 0) + 1


def inter(a, b):
    return bool(set(a) & set(b))


def need_states(p, c):
    n = 0
    vw = [x for x in p.w if x[0] in "va"]
    sw = [x for x in p.w if x[0] == "s" or x == ("x", "vcc")]
    if p.kind == "valu":
        if c.kind == "mfma" and inter(vw, c.r):
            n = max(n, 3 if p.dl else 2)
        if c.kind == "valu":
            if p.trans and not c.trans and inter(vw, c.r): n = max(n, 1)
            if c.mn.startswith("v_permlane") and inter(vw, c.r): n = max(n, 2)
            if "dpp" in c.mn and inter(vw, c.r): n = max(n, 2)
            if c.mn.startswith(("v_readfirstlane", "v_readlane")) and inter(vw, c.r): n = max(n, 1)
            if inter(sw, c.r): n = max(n, 4 if c.mn.startswith(("v_readlane", "v_writelane")) else 2)
            if "sdwa" in p.mn and inter(vw, c.r + c.w): n = max(n, 1)
            if ("x", "exec") in p.w: n = max(n, 5)
        if p.dl and inter(vw, c.r + c.w):
            same_acc = c.mn == p.mn and c.w == p.w and not inter(vw, sum((regs_of(o) for o in c.ops[1:3]), []))
            if not same_acc: n = max(n, 3)
        if p.trans and c.kind in ("vmem", "ds", "mfma") and inter(vw, c.r): n = max(n, 2)
        if c.kind == "vmem" and inter(sw, c.r): n = max(n, 5)
        if c.kind == "mfma" and ("x", "exec") in p.w: n = max(n, 4)
    if p.kind == "salu" and ("x", "m0") in p.w and c.kind == "vmem" and ("x", "m0") in c.r:
        n = max(n, 1)
    if p.kind == "vmem" and len(p.data) >= 3 and inter(p.data, c.w):
        n = max(n, 2)
    if p.kind == "mfma":
        big = p.passes == 8
        if c.kind == "mfma":
            if inter(p.D, c.A + c.B): n = max(n, 12 if big else 8)
            if inter(p.D, c.C):
                if not (p.D == c.C and p.passes == c.passes): n = max(n, 10 if big else 6)
            elif inter(p.D, c.D):
                if not (p.D == c.D and p.passes == c.passes): n = max(n, 10 if big else 6)
        elif c.kind in ("valu", "vmem", "ds"):
            if inter(p.D, c.r + c.w): n = max(n, 12 if big else 8)
            if c.kind == "valu" and inter(p.C, c.w): n = max(n, 7 if big else 3)
    return n


def process(lines, verbose=False):
    out = []
    hist = []
    vm, lg = [], []
    smem_pending = []
    tag = None
    stats = {"nops": 0, "waits": 0}

    def emit(text):
        ins = Ins(text)
        out.append(text)
        hist.append(ins)
        if len(hist) > 24:
            hist.pop(0)

    def wait(vn=None, ln=None):
        parts = []
        if vn is not None and vn < len(vm):
            vn = min(vn, 63)
            parts.append(f"vmcnt({vn})")
            del vm[:len(vm) - vn]
        if ln is not None and ln < len(lg):
            ln = min(ln, 15)
            if smem_pending: ln = 0
            parts.append(f"lgkmcnt({ln})")
            del lg[:len(lg) - ln]
            if ln == 0: smem_pending.clear()
        if parts:
            emit("s_waitcnt " + " ".join(parts))
            stats["waits"] += 1

    def cover(q, pred):
        idx = -1
        for i, e in enumerate(q):
            if pred(e): idx = i
        return None if idx < 0 else len(q) - 1 - idx

    for line in lines:
        s = line.strip()
        if not s or s.startswith(";") or s.startswith("."):
            out.append(line); continue
        if s.endswith(":"):
            out.append(line); continue
        if s.startswith("@"):
            p = s.split()
            if p[0] == "@tag": tag = p[1]
            elif p[0] == "@nocount": tag = "__nocount"
            elif p[0] == "@wait":
                names = set(p[1:])
                wait(cover(vm, lambda e: e[1] in names), cover(lg, lambda e: e[1] in names))
            elif p[0] == "@waitreg":
                rs = set(sum((regs_of(x) for x in p[1:]), []))
                wait(cover(vm, lambda e: rs & e[0]), cover(lg, lambda e: rs & e[0]))
            elif p[0] == "@reset":
                vm.clear(); lg.clear(); smem_pending.clear()
            else:
                raise ValueError(s)
            continue
        ins = Ins(s)
        if ins.mn == "s_waitcnt":
            m = re.search(r"vmcnt\((\d+)\)", s)
            if m:
                n = int(m.group(1))
                if n < len(vm): del vm[:len(vm) - n]
            m = re.search(r"lgkmcnt\((\d+)\)", s)
            if m:
                n = int(m.group(1))
                if n == 0:
                    lg.clear(); smem_pending.clear()
                elif not smem_pending and n < len(lg): del lg[:len(lg) - n]
            emit(s); continue
        touched = set(ins.r + ins.w)
        wait(cover(vm, lambda e: touched & e[0]), cover(lg, lambda e: touched & e[0]))
        if ins.kind == "vmem" and len(vm) >= 63:
            wait(62, None)
        dist = 0
        need = 0
        for p in reversed(hist):
            need = max(need, need_states(p, ins) - dist)
            dist += p.states
            if dist >= 20: break
        if need > 0:
            if verbose: print(f"nop {need} before: {s}")
            stats["nops"] += need
            while need > 0:
                k = min(need, 16)
                emit(f"s_nop {k-1}")
                need -= k
        emit(s)
        if ins.kind in ("vmem", "ds") and tag == "__nocount":
            tag = None
        elif ins.kind == "vmem":
            vm.append((set(ins.w), tag)); tag = None
        elif ins.kind == "ds":
            lg.append((set(ins.w), tag)); tag = None
        elif ins.kind == "smem":
            lg.append((set(ins.w), tag)); smem_pending.append(1); tag = None
    return out, stats
```

```python
import sys, math, struct
from asmgen import Asm
import sched

NAME = "sequential_preLN__grouped_kv_mqa__geglu_ffn__prompt"
KNAME = NAME + "_kernel"

F1, F2, F3, FP = 0x0, 0x8000, 0x10000, 0x18000
KV = 0x20000
QO = 0x60000
WO = 0x220000
GU = 0x290000
WD = 0x5A0000
HN = 0x730000
HH = 0x8F0000
ACT = 0xAB0000
STAMP = 0x1200000

L_PREP = 114688
L_MERGE = 86016
L_O = 143360
L_DUMMY = L_O + 7424
L_STAT = L_O + 7680
L_BAD = L_STAT + 256
L_Q = L_O + 8192
L_CS = 135168
L_VT = 135680
L_RED = 57344
LDS_BYTES = 163840

SPIN = 0x40000


def f32(x):
    return "0x%08x" % struct.unpack("<I", struct.pack("<f", x))[0]


def vr(a, n=1, k="v"):
    return f"{k}{a}" if n == 1 else f"{k}[{a}:{a+n-1}]"


class G(Asm):
    def __init__(self, opt):
        super().__init__()
        self.opt = opt
        self.nstamp = 0
        self.tail = []

    def stamp(self, name):
        if not self.opt.get("prof"):
            return
        i = self.nstamp
        self.nstamp += 1
        self.opt.setdefault("stamps", []).append(name)
        self("s_memrealtime s[66:67]")
        self("s_waitcnt lgkmcnt(0)")
        self(f"s_mov_b32 s{70+i}, s66")

    def sadd64(self, d, s, val):
        self(f"s_add_u32 s{d}, s{s}, {val}")
        self(f"s_addc_u32 s{d+1}, s{s+1}, 0")

    def poll(self, vaddr, sbase, tmp):
        lab, done = self.label("L_poll"), self.label("L_polld")
        self(f"s_mov_b32 s3, {SPIN}")
        self(f"{lab}:")
        self(f"global_load_dword v{tmp}, v{vaddr}, s[{sbase}:{sbase+1}] sc1")
        self("s_waitcnt vmcnt(0)")
        self(f"v_cmp_ne_u32 vcc, 1, v{tmp}")
        self(f"s_cbranch_vccz {done}")
        self("s_sub_u32 s3, s3, 1")
        self(f"s_cbranch_scc0 {lab}")
        self(f"{done}:")

    def set_flag(self, soff, wave0_only=True):
        lab = self.label("L_nf")
        if wave0_only:
            self(f"s_cmp_lg_u32 s28, 0\ns_cbranch_scc1 {lab}")
        self(f"v_mov_b32 v6, s{soff}\nv_mov_b32 v7, 1\ns_mov_b64 exec, 1")
        self("@nocount\nglobal_store_dword v6, v7, s[26:27] sc1")
        self("s_mov_b64 exec, -1")
        if wave0_only:
            self(f"{lab}:")


def phase_a(A):
    A("; ---- prologue ----")
    A("s_cmp_ge_u32 s2, 256\ns_cbranch_scc1 L_exit")
    A("s_load_dwordx16 s[4:19], s[0:1], 0")
    A("s_load_dwordx8 s[20:27], s[0:1], 64")
    A("v_lshrrev_b32 v2, 6, v0\nv_and_b32 v0, 63, v0")
    A("s_and_b32 s29, s2, 7\ns_lshr_b32 s30, s2, 3")
    A("v_readfirstlane_b32 s28, v2")
    A("s_lshr_b32 s31, s30, 3\ns_lshl2_add_u32 s31, s29, s31\ns_and_b32 s32, s30, 7")
    A("v_lshlrev_b32 v1, 4, v0")
    A("v_lshrrev_b32 v2, 3, v0\nv_and_b32 v3, 7, v0\nv_lshrrev_b32 v4, 4, v0")
    A("v_xor_b32 v5, v3, v4\nv_lshlrev_b32 v5, 4, v5")
    A("s_movk_i32 s35, 896\nv_mad_u32_u24 v8, v2, s35, v5")
    A("s_movk_i32 s36, 6144\nv_xad_u32 v9, v8, 64, s36")
    A("v_and_b32 v5, 1, v4\nv_lshlrev_b32 v5, 2, v5\nv_xor_b32 v5, v3, v5")
    A("v_cmp_lt_u32 vcc, 3, v5")
    A("v_and_b32 v5, 3, v5\nv_lshlrev_b32 v5, 4, v5")
    A("s_cmp_eq_u32 s32, 7")
    A("s_cselect_b32 s38, 56, s35\ns_cselect_b32 s39, 40, 48")
    A("v_min_u32 v5, s39, v5\nv_mad_u32_u24 v5, v2, s38, v5")
    A("s_lshl_b32 s40, s31, 2\ns_add_u32 s40, s40, s28\ns_mul_i32 s40, s40, 16*896")
    A("s_lshl_b32 s41, s32, 7")
    A("s_mul_i32 s42, s28, s38\ns_lshl_b32 s42, s42, 4")
    A("s_lshl_b32 s44, s38, 6\ns_sub_u32 s44, s44, 128\ns_mov_b32 s45, 0")
    A("s_lshl_b32 s46, s38, 3\ns_sub_u32 s46, s46, 1024\ns_ashr_i32 s47, s46, 31")
    A("s_lshl_b32 s43, s28, 12")
    A("v_add_u32 v10, s42, v5\nv_mov_b32 v11, 0")
    A("s_waitcnt lgkmcnt(0)")
    A.stamp("karg")
    A("s_add_u32 s36, s4, s40\ns_addc_u32 s37, s5, 0")
    A("s_add_u32 s48, s6, s41\ns_addc_u32 s49, s7, 0")
    A("s_add_u32 s50, s48, 64\ns_addc_u32 s51, s49, 0")
    A("s_cmp_eq_u32 s32, 7")
    A("s_cselect_b64 s[48:49], s[8:9], s[48:49]\ns_cselect_b64 s[50:51], s[10:11], s[50:51]")
    A("s_sub_u32 s48, s48, 2048\ns_subb_u32 s49, s49, 0\ns_sub_u32 s50, s50, 2048\ns_subb_u32 s51, s51, 0")
    A("v_mov_b32 v12, s48\nv_mov_b32 v13, s49\nv_mov_b32 v14, s50\nv_mov_b32 v15, s51")
    A("v_cndmask_b32 v12, v12, v14, vcc\nv_cndmask_b32 v13, v13, v15, vcc")
    A("v_lshl_add_u64 v[10:11], v[10:11], 0, v[12:13]")
    A("v_lshl_add_u64 v[12:13], s[46:47], 0, v[10:11]")
    lab = A.label("L_noinit")
    A(f"s_cmp_lg_u32 s2, 255\ns_cbranch_scc1 {lab}")
    A("s_lshl_b32 s3, s28, 6\nv_add_u32 v14, s3, v0\nv_lshlrev_b32 v15, 7, v14\nv_mov_b32 v16, 0")
    A(f"v_lshlrev_b32 v14, 2, v14\nv_add_u32 v14, {FP}, v14")
    A("@nocount\nglobal_store_dword v15, v16, s[26:27] sc1")
    A(f"v_add_u32 v17, {F2}, v15\nv_add_u32 v18, {F3}, v15\nv_mov_b32 v20, 0\nv_mov_b32 v21, 0\nv_mov_b32 v22, 0\nv_mov_b32 v23, 0")
    A("@nocount\nglobal_store_dword v17, v16, s[26:27] sc1")
    A("@nocount\nglobal_store_dwordx4 v18, v[20:23], s[26:27] sc1")
    A("@nocount\nglobal_store_dword v14, v16, s[26:27] sc1")
    A(f"{lab}:")
    A("s_mov_b32 m0, s43")
    for c in range(7):
        for i, (va, off) in enumerate([("v8, s[36:37]", 0), ("v9, s[36:37]", 1024), ("v[10:11], off", 2048), ("v[12:13], off", 3072)]):
            A(f"@tag ch{c}\nglobal_load_lds_dwordx4 {va} offset:{off+128*c}")
        if c < 6:
            A(f"s_add_u32 m0, m0, {16384-128}")
            A("v_lshl_add_u64 v[10:11], s[44:45], 0, v[10:11]\nv_lshl_add_u64 v[12:13], s[44:45], 0, v[12:13]")
    A("s_getpc_b64 s[14:15]\nL_pc0:")
    A("s_lshl_b32 s3, s30, 2\ns_add_u32 s3, s3, s28\ns_lshl_b32 s3, s3, 9")
    A("v_and_b32 v5, 3, v0\nv_lshlrev_b32 v5, 7, v5\nv_add_u32 v5, s3, v5")
    A("s_mov_b32 s3, L_code_end-L_pc0-4\nv_min_u32 v5, s3, v5")
    A("@tag pf\nglobal_load_dword v255, v5, s[14:15]")
    lgu, lwd, ldone = A.label("L_gu"), A.label("L_wd"), A.label("L_pdone")
    A("v_and_b32 v14, 15, v0\nv_lshrrev_b32 v15, 2, v14\nv_and_b32 v14, 3, v14")
    A("v_and_b32 v16, 1, v14\nv_lshrrev_b32 v17, 1, v14\nv_lshl_or_b32 v16, v16, 1, v17")
    A("v_and_b32 v17, 1, v4\nv_lshrrev_b32 v18, 1, v4")
    A(f"s_cmp_lt_u32 s2, 157\ns_cbranch_scc1 {lgu}")
    A(f"s_cmp_lt_u32 s2, 236\ns_cbranch_scc1 {lwd}")
    A("s_movk_i32 s52, 14\ns_movk_i32 s53, 4682\ns_movk_i32 s54, 32*896\ns_mov_b32 s55, 56*1024\ns_movk_i32 s56, 1024")
    A(f"s_mul_i32 s57, s28, 14*1024\ns_add_u32 s57, s57, {WO}\ns_sub_u32 s58, s2, 236\ns_movk_i32 s59, 97")
    A("s_mul_i32 s3, s28, 8*896\ns_add_u32 s60, s12, s3\ns_addc_u32 s61, s13, 0")
    A("v_lshl_add_u32 v19, v4, 3, v15\nv_lshlrev_b32 v20, 3, v14\ns_lshl_b32 s3, s28, 5")
    A(f"s_branch {ldone}")
    A(f"{lwd}:")
    A("s_movk_i32 s52, 56\ns_movk_i32 s53, 1171\ns_movk_i32 s54, 32*896\ns_mov_b32 s55, 224*1024\ns_movk_i32 s56, 4096")
    A(f"s_lshl_b32 s57, s28, 10\ns_add_u32 s57, s57, {WD}\ns_sub_u32 s58, s2, 157\ns_movk_i32 s59, 391")
    A("s_mul_i32 s3, s28, 8*896\ns_add_u32 s60, s20, s3\ns_addc_u32 s61, s21, 0")
    A("v_lshl_add_u32 v19, v18, 3, v15\nv_lshlrev_b32 v20, 3, v16\nv_lshl_add_u32 v20, v17, 5, v20")
    A("s_lshr_b32 s3, s28, 1\ns_lshl_b32 s3, s3, 11\ns_and_b32 s62, s28, 1\ns_lshl_b32 s62, s62, 6\ns_add_u32 s3, s3, s62")
    A(f"s_branch {ldone}")
    A(f"{lgu}:")
    A("s_movk_i32 s52, 28\ns_movk_i32 s53, 2341\ns_mov_b32 s54, 16*3584\ns_mov_b32 s55, 112*1024\ns_movk_i32 s56, 1024")
    A(f"s_mul_i32 s57, s28, 28*1024\ns_add_u32 s57, s57, {GU}\ns_mov_b32 s58, s2\ns_movk_i32 s59, 783")
    A("s_cmp_lt_u32 s28, 2\ns_cselect_b64 s[60:61], s[16:17], s[18:19]")
    A("s_and_b32 s3, s28, 1\ns_mul_i32 s3, s3, 8*3584\ns_add_u32 s60, s60, s3\ns_addc_u32 s61, s61, 0")
    A("s_movk_i32 s35, 3584")
    A("v_lshl_add_u32 v19, v18, 3, v15\nv_lshl_add_u32 v19, v17, 4, v19\nv_lshlrev_b32 v20, 3, v16\ns_lshl_b32 s3, s28, 5")
    A(f"{ldone}:")
    A(f"s_add_u32 s3, s3, {L_PREP}")
    A("v_lshl_add_u32 v250, v19, 7, v20\nv_add_u32 v250, s3, v250")
    A("v_lshlrev_b32 v5, 4, v3\nv_mad_u32_u24 v5, v2, s35, v5")
    A("s_mul_i32 s58, s58, 5")
    A(f"s_lshl_b32 s3, s28, 10\ns_add_u32 m0, s3, {L_PREP}")
    for i in range(5):
        A(f"s_add_u32 s3, s58, {i}\ns_min_u32 s3, s3, s59")
        A("s_mul_i32 s62, s3, s53\ns_lshr_b32 s62, s62, 16\ns_mul_i32 s63, s62, s52\ns_sub_u32 s63, s3, s63")
        A("s_mul_i32 s64, s63, s54\ns_lshl_b32 s65, s62, 7\ns_add_u32 s64, s64, s65")
        A("s_add_u32 s64, s60, s64\ns_addc_u32 s65, s61, 0")
        A("@tag prep\nglobal_load_lds_dwordx4 v5, s[64:65]")
        A(f"s_mul_i32 s62, s62, s55\ns_mul_i32 s63, s63, s56\ns_add_u32 s62, s62, s63\ns_add_u32 s{40+i}, s62, s57")
        if i < 4:
            A("s_add_u32 m0, m0, 4096")
    A("v_and_b32 v6, 31, v0\nv_lshrrev_b32 v7, 5, v0")
    A("v_and_b32 v19, 15, v0\nv_lshlrev_b32 v20, 7, v19")
    A("v_lshrrev_b32 v19, 1, v19\nv_xor_b32 v19, v19, v7\nv_lshl_or_b32 v20, v19, 4, v20")
    A("v_lshl_add_u32 v20, v17, 12, v20")
    A("s_lshr_b32 s3, s28, 1\ns_lshl_b32 s3, s3, 13\nv_add_u32 v20, s3, v20")
    A("v_xor_b32 v21, 32, v20\nv_xor_b32 v22, 64, v20\nv_xor_b32 v23, 0x60, v20")
    A("v_lshl_add_u32 v19, v17, 2, v14")
    A("s_cmp_eq_u32 s32, 7\ns_cselect_b32 s3, 6, 8")
    A("v_cmp_eq_u32 vcc, s3, v19\nv_cndmask_b32 v19, v19, 7, vcc\nv_lshlrev_b32 v19, 3, v19")
    A("s_and_b32 s3, s28, 1\ns_lshl_b32 s3, s3, 6\nv_or_b32 v19, s3, v19")
    A("v_bfe_u32 v24, v0, 3, 1\nv_lshlrev_b32 v24, 6, v24\nv_xor_b32 v19, v19, v24")
    A("v_lshl_add_u32 v24, v18, 3, v15\nv_lshl_add_u32 v24, v24, 7, v19\nv_add_u32 v24, 2048, v24")
    for i in range(5):
        A(f"v_add_u32 v{25+i}, 0x10000, v{20+i}")
    A("v_mov_b32 v30, 0\nv_mov_b32 v31, 0\nv_mov_b32 v32, 0\ns_mov_b32 s35, 0x3f803f80")
    XB, WB, ACC = 64, 96, 40

    def reads(c):
        b = (c & 1) * 16
        hi = 5 if c >= 4 else 0
        base = (c % 4) * 16384
        for sl in range(4):
            A(f"ds_read_b128 {vr(XB+b+4*sl,4)}, v{20+sl+hi} offset:{base}")
            A(f"ds_read_b64_tr_b16 {vr(WB+b+4*sl,2)}, v{24+hi} offset:{base+4096*sl}")
            A(f"ds_read_b64_tr_b16 {vr(WB+b+4*sl+2,2)}, v{24+hi} offset:{base+4096*sl+512}")

    def compute(c):
        b = (c & 1) * 16
        for r in range(16):
            A(f"v_dot2c_f32_bf16 v30, s35, v{XB+b+r}")
            A(f"v_dot2c_f32_bf16 v31, v{XB+b+r}, v{XB+b+r}")
            A(f"v_dot2c_f32_bf16 v32, s35, v{WB+b+r}")
        for sl in range(4):
            cin = "0" if (c == 0 and sl == 0) else vr(ACC, 16)
            A(f"v_mfma_f32_32x32x16_bf16 {vr(ACC,16)}, {vr(WB+b+4*sl,4)}, {vr(XB+b+4*sl,4)}, {cin}")

    for c in range(7):
        A(f"@wait ch{c}\ns_barrier")
        if c == 0:
            A.stamp("ch0")
            lab = A.label("L_noinit2")
            A(f"s_cmp_lg_u32 s2, 255\ns_cbranch_scc1 {lab}\ns_cmp_lg_u32 s28, 0\ns_cbranch_scc1 {lab}")
            A("v_mov_b32 v33, 0\nv_mov_b32 v34, 1\ns_mov_b64 exec, 1")
            A("@nocount\nglobal_store_dword v33, v34, s[24:25] sc1")
            A(f"s_mov_b64 exec, -1\n{lab}:")
        reads(c)
        if c > 0:
            compute(c - 1)
    A.stamp("ch6")
    A("v_mov_b32 v33, 0\n@tag init\nglobal_load_dword v251, v33, s[24:25] sc1")
    compute(6)
    A("v_mov_b32 v33, v30\nv_mov_b32 v34, v31\nv_mov_b32 v35, v32")
    A("v_permlane32_swap_b32 v30, v33\nv_permlane32_swap_b32 v31, v34\nv_permlane32_swap_b32 v32, v35")
    A("v_add_f32 v32, v32, v35\nv_add_f32 v30, v30, v33\nv_add_f32 v31, v31, v34")
    A(f"s_lshl_b32 s3, s28, 7\ns_add_u32 s3, s3, {L_CS}")
    A("v_lshl_add_u32 v33, v6, 2, s3\nv_lshl_add_u32 v34, v7, 4, s3")
    A("@tag cs\nds_write_b32 v33, v32")
    A(f"v_mul_f32 v30, {f32(1/448)}, v30\nv_mul_f32 v31, {f32(1/448)}, v31")
    A("v_fma_f32 v31, -v30, v30, v31\nv_max_f32 v31, 0, v31")
    A(f"v_add_f32 v31, {f32(1e-5)}, v31\nv_rsq_f32 v31, v31")
    A("@wait cs")
    for g in range(4):
        A(f"ds_read_b128 {vr(64+4*g,4)}, v34 offset:{32*g}")
    qs = 28 ** -0.5 * math.log2(math.e)
    A(f"s_cmp_eq_u32 s32, 7\ns_cselect_b32 s3, 1.0, {f32(qs)}")
    A("v_mul_f32 v31, s3, v31")
    A("@wait prep\ns_barrier")
    for r in range(16):
        A(f"v_fma_f32 v{64+r}, -v30, v{64+r}, v{ACC+r}")
    for r in range(16):
        A(f"v_mul_f32 v{64+r}, v31, v{64+r}")
    for r in range(8):
        A(f"v_cvt_pk_bf16_f32 v{80+r}, v{64+2*r}, v{65+2*r}")
    lkv, lst = A.label("L_kv"), A.label("L_st")
    A("s_lshr_b32 s62, s28, 1\ns_lshl1_add_u32 s62, s31, s62\ns_and_b32 s63, s28, 1")
    A(f"s_cmp_eq_u32 s32, 7\ns_cbranch_scc1 {lkv}")
    A(f"s_mul_i32 s62, s62, 14\ns_lshl1_add_u32 s63, s32, s63\ns_add_u32 s62, s62, s63\ns_lshl_b32 s62, s62, 11\ns_add_u32 s62, s62, {QO}")
    A("v_lshlrev_b32 v33, 5, v6\nv_lshl_add_u32 v33, v7, 4, v33\nv_add_u32 v33, s62, v33")
    A(f"s_branch {lst}")
    A(f"{lkv}:")
    A(f"s_lshl1_add_u32 s62, s62, s63\ns_lshl_b32 s62, s62, 11\ns_add_u32 s62, s62, {KV}\nv_add_u32 v33, s62, v1")
    A("s_mul_i32 s3, s63, 0x3f80")
    A("s_mov_b32 exec_lo, 0\nv_mov_b32 v86, s3\nv_mov_b32 v87, 0\ns_mov_b32 exec_lo, -1")
    A(f"s_cmp_eq_u32 s63, 0\ns_cbranch_scc1 {lst}")
    A(f"s_lshr_b32 s3, s28, 1\ns_lshl_b32 s3, s3, 11\ns_add_u32 s3, s3, {L_VT}")
    A("v_lshlrev_b32 v34, 6, v6\nv_lshl_add_u32 v34, v7, 3, v34\nv_add_u32 v34, s3, v34")
    for g in range(4):
        A(f"@nocount\nds_write_b64 v34, {vr(80+2*g,2)} offset:{16*g}")
    A("v_lshl_add_u32 v35, v18, 3, v15\nv_lshlrev_b32 v35, 6, v35\nv_lshl_add_u32 v35, v17, 5, v35\nv_lshl_add_u32 v35, v14, 3, v35\nv_add_u32 v35, s3, v35")
    A("s_waitcnt lgkmcnt(0)")
    for c in range(2):
        for u in range(2):
            A(f"@nocount\nds_read_b64_tr_b16 {vr(80+4*c+2*u,2)}, v35 offset:{1024*c+256*u}")
    A("s_waitcnt lgkmcnt(0)")
    A(f"{lst}:")
    A("@tag qkv\nglobal_store_dwordx4 v33, v[80:83], s[26:27] sc1")
    A("@tag qkv\nglobal_store_dwordx4 v33, v[84:87], s[26:27] offset:1024 sc1")
    A.stamp("qkv_st")
    for i in range(5):
        for u in range(2):
            A(f"ds_read_b64_tr_b16 {vr(96+4*i+2*u,2)}, v250 offset:{4096*i+512*u}")
    for i in range(5):
        A(f"v_add_u32 v{34+i}, s{40+i}, v1")
    for i in range(5):
        A(f"@tag pst\nglobal_store_dwordx4 v{34+i}, {vr(96+4*i,4)}, s[26:27] sc1")
    A("@wait qkv init")
    lok = A.label("L_initok")
    A(f"v_cmp_ne_u32 vcc, 1, v251\ns_cbranch_vccz {lok}")
    A("v_mov_b32 v33, 0")
    A.poll(33, 24, 251)
    A(f"{lok}:")
    A("s_barrier")
    A(f"s_lshl3_add_u32 s3, s31, s32\ns_lshl_b32 s62, s3, 7")
    A.set_flag(62)
    A.stamp("f1")


S0, O0, Q0, KV0, X0 = 16, 64, 128, 160, 208


def wo_reg(f):
    if f < 64:
        return vr(4 * f, 4, "a")
    if f < 72:
        return vr(224 + 4 * (f - 64), 4)
    late = [KV0 + 16 + 4 * i for i in range(4)] + [KV0 + 32 + 4 * i for i in range(4)] + \
           [Q0 + 4 * i for i in range(2)] + [KV0 + 4 * i for i in range(4)] + [S0 + 4 * i for i in range(12)]
    return vr(late[f - 72], 4)


class Stream:
    def __init__(self, A, sreg):
        self.A, self.s, self.base = A, sreg, 0

    def addr(self, idx, pre):
        while idx - self.base >= 8:
            pre.append(f"s_add_u32 s{self.s}, s{self.s}, 8192")
            pre.append(f"s_addc_u32 s{self.s+1}, s{self.s+1}, 0")
            self.base += 8
        assert 0 <= idx - self.base < 8
        return f"s[{self.s}:{self.s+1}] offset:{(idx-self.base-4)*1024}"


def q_gather(A):
    for a in range(4):
        for p in range(4):
            d = Q0 + 8 * a + 2 * p
            A(f"v_add_u32 v{d}, s{52+a}, v{10+p}")


def q_read(A):
    for a in range(4):
        for p in range(4):
            d = Q0 + 8 * a + 2 * p
            A(f"ds_read_b64 {vr(d,2)}, v{d}")
    A("s_waitcnt lgkmcnt(0)\ns_mov_b32 exec_lo, 0")
    for a in range(4):
        A(f"v_mov_b32 v{Q0+8*a+6}, 0\nv_mov_b32 v{Q0+8*a+7}, 0")
    A("s_mov_b32 exec_lo, -1")


def phase_b(A):
    A("; ---- phase B setup ----")
    A("s_lshl_b32 s3, s28, 3\nv_and_b32 v8, 7, v0\nv_add_u32 v9, s3, v8\nv_lshlrev_b32 v9, 3, v9\nv_or_b32 v9, 7, v9")
    A("s_lshl_b32 s3, s31, 3\nv_add_u32 v8, s3, v8")
    A("v_and_b32 v10, 8, v0\nv_cmp_eq_u32 vcc, 0, v10\nv_cndmask_b32 v8, v8, v9, vcc\nv_lshlrev_b32 v8, 7, v8")
    A("v_bfe_u32 v14, v0, 3, 2\nv_mul_u32_u24 v14, 7, v14\nv_lshrrev_b32 v15, 5, v0\nv_add_u32 v14, v14, v15")
    A("v_and_b32 v15, 7, v0\nv_lshlrev_b32 v15, 5, v15")
    for p in range(4):
        A(f"v_add_u32 v2, {2*p}, v14")
        A("v_lshrrev_b32 v3, 2, v2\nv_lshl_add_u32 v3, v3, 8, v15")
        A("v_and_b32 v4, 1, v2\nv_lshl_add_u32 v3, v4, 4, v3")
        A(f"v_bfe_u32 v4, v2, 1, 1\nv_lshl_add_u32 v{10+p}, v4, 3, v3")
    for a in range(4):
        A(f"s_add_u32 s3, s28, {a}\ns_and_b32 s3, s3, 3\ns_mul_i32 s3, s3, 1792\ns_add_u32 s{52+a}, s3, {L_Q}")
    q_gather(A)
    for r in range(64):
        A(f"v_mov_b32 v{O0+r}, 0")
    A("v_mov_b32 v5, 0xdddddddd")
    A("s_lshl_b32 s33, s29, 5\ns_add_u32 s33, s33, s30")
    A(f"s_lshr_b32 s3, s33, 2\ns_mul_i32 s3, s3, 28672\ns_and_b32 s62, s33, 3\ns_lshl_b32 s62, s62, 8\ns_add_u32 s3, s3, s62\ns_add_u32 s3, s3, {QO}")
    A("v_lshrrev_b32 v2, 4, v0\nv_and_b32 v3, 15, v0\nv_lshlrev_b32 v3, 4, v3\nv_lshl_add_u32 v9, v2, 10, v3\nv_add_u32 v9, s3, v9")
    A("s_add_u32 s62, s28, 4\ns_min_u32 s62, s62, 6")
    A("s_lshl_b32 s3, s28, 12\nv_add_u32 v2, s3, v9\ns_lshl_b32 s3, s62, 12\nv_add_u32 v3, s3, v9")
    A(f"s_lshl_b32 s56, s28, 10\ns_add_u32 s56, s56, {L_Q}\ns_lshl_b32 s57, s62, 10\ns_add_u32 s57, s57, {L_Q}")
    A(f"s_lshl_b32 s3, s28, 16\ns_add_u32 s3, s3, {KV+4096}")
    A("s_add_u32 s36, s26, s3\ns_addc_u32 s37, s27, 0\ns_mov_b32 s38, s36\ns_mov_b32 s39, s37")
    A(f"s_mul_i32 s3, s28, 98*1024\ns_add_u32 s3, s3, {WO+4096}")
    A("s_add_u32 s40, s26, s3\ns_addc_u32 s41, s27, 0")
    A("s_mul_i32 s3, s33, 8*896\ns_mul_i32 s62, s28, 224\ns_add_u32 s3, s3, s62\ns_add_u32 s42, s4, s3\ns_addc_u32 s43, s5, 0")
    A("v_and_b32 v4, 7, v0\nv_mul_u32_u24 v4, 896, v4\nv_lshrrev_b32 v14, 4, v0\nv_lshl_add_u32 v4, v14, 3, v4")
    A(f"v_add_u32 v14, {FP}, v1")
    A("s_waitcnt vmcnt(0)\ns_barrier")
    A(f"s_lshl_b32 s62, s2, 2\ns_add_u32 s62, s62, {FP}")
    A.set_flag(62)
    A.stamp("fp")
    A.poll(8, 26, 15)
    A("@reset")
    A.stamp("poll1")
    A("s_mov_b32 m0, s56\n@tag q\nglobal_load_lds_dwordx4 v2, s[26:27] sc1")
    A("s_mov_b32 m0, s57\n@tag q\nglobal_load_lds_dwordx4 v3, s[26:27] sc1")
    ks, vs, ws_ = Stream(A, 36), Stream(A, 38), Stream(A, 40)

    def ld_k(kt, pre, out):
        for s in range(2):
            out.append(f"global_load_dwordx4 {vr(KV0+16*(kt%3)+4*s,4)}, v1, {ks.addr(4*kt+s, pre)} sc1")

    def ld_v(kt, pre, out):
        for c in range(2):
            out.append(f"global_load_dwordx4 {vr(KV0+16*(kt%3)+8+4*c,4)}, v1, {vs.addr(4*kt+2+c, pre)} sc1")

    def ld_wo(f, pre, out):
        out.append(f"global_load_dwordx4 {wo_reg(f)}, v1, {ws_.addr(f, pre)} sc1")

    for kt in range(3):
        o = []
        ld_k(kt, o, o); ld_v(kt, o, o)
        for x in o: A(x)
    A("@wait q\ns_barrier")
    q_read(A)
    A(f"global_load_dwordx4 v[224:227], v14, s[26:27] sc1")

    def qk(i, s):
        kt, a = i >> 2, i & 3
        d = vr(S0 + 16 * (i % 3), 16)
        return f"v_mfma_f32_32x32x16_bf16 {d}, {vr(KV0+16*(kt%3)+4*s,4)}, {vr(Q0+8*a+4*s,4)}, {'0' if s == 0 else d}"

    def pv(i, c):
        kt, a = i >> 2, i & 3
        return f"v_smfmac_f32_32x32x32_bf16 {vr(O0+16*a,16)}, {vr(KV0+16*(kt%3)+8+4*c,4)}, {vr(S0+16*(i%3)+8*c,8)}, v5"

    def exps(i, g):
        for r in range(4 * g, 4 * g + 4):
            A(f"v_exp_f32 v{S0+16*(i%3)+r}, v{S0+16*(i%3)+r}")

    A.stamp("attn0")
    A(qk(0, 0)); A(qk(0, 1))
    nwo, nx = 0, 0
    per = A.opt.get("wo_per", 3)
    for i in range(64):
        kt = i >> 2
        pre, lds_ = [], []
        if i % 4 == 3 and kt + 3 < 16: ld_k(kt + 3, pre, lds_)
        if i % 4 == 1 and i >= 5 and kt + 2 < 16: ld_v(kt + 2, pre, lds_)
        if i % 2 == 1 and i >= 5:
            lim = 72
            if i >= 57: lim = 76
            if i >= 61: lim = 80
            n = 0
            while n < (per if i < 54 else per + 2) and nwo < lim and not (n > 0 and nwo % 8 == 0):
                ld_wo(nwo, pre, lds_); nwo += 1; n += 1
            if i >= 41 and nx < 7:
                lds_.append(f"global_load_dwordx2 {vr(X0+2*nx,2)}, v4, s[42:43] offset:{32*nx}"); nx += 1
        if i < 63: A(qk(i + 1, 0))
        for x in pre[:2]: A(x)
        exps(i, 0)
        if i < 63: A(qk(i + 1, 1))
        for x in pre[2:]: A(x)
        if i % 4 == 1: A(f"@waitreg {vr(KV0+16*(kt%3)+8,8)}")
        exps(i, 1)
        if i > 0: A(pv(i - 1, 0))
        for x in lds_: A(x)
        exps(i, 2)
        if i > 0: A(pv(i - 1, 1))
        if i % 4 == 2 and kt < 15: A(f"@waitreg {vr(KV0+16*((kt+1)%3),8)}")
        if i == 4:
            A("v_and_b32 v224, v224, v225\nv_and_b32 v226, v226, v227\nv_and_b32 v224, v224, v226")
            A("v_cmp_ne_u32 vcc, 1, v224\ns_cbranch_vccnz L_fpspin\nL_fpok:")
        exps(i, 3)
    A(pv(63, 0)); A(pv(63, 1))
    A.stamp("attn1")
    A.tail += [f"L_fpspin:", f"s_mov_b32 s3, {SPIN}", "L_fpspin2:", "global_load_dwordx4 v[224:227], v14, s[26:27] sc1", "s_waitcnt vmcnt(0)",
               "v_and_b32 v224, v224, v225", "v_and_b32 v226, v226, v227", "v_and_b32 v224, v224, v226",
               "v_cmp_ne_u32 vcc, 1, v224", "s_cbranch_vccz L_fpok", "s_sub_u32 s3, s3, 1", "s_cbranch_scc0 L_fpspin2", "s_branch L_fpok"]
    while nwo < 98:
        o = []
        ld_wo(nwo, o, o); nwo += 1
        for x in o: A(x)
    assert nx == 7


def dma_tile(A, slot, srd, tag):
    for g, n in ((0, 4), (4, 3)):
        A(f"s_add_u32 m0, s58, {slot*28672 + g*1024}")
        for i in range(n):
            A(f"@tag {tag}\nbuffer_load_dwordx4 v1, s[{srd}:{srd+3}], m0 offen offset:{i*1024} sc1 lds")


def phase_c(A):
    A("; ---- merge key-split partials, output projection, LN2 ----")
    A("s_lshr_b32 s34, s29, 1\ns_lshr_b32 s3, s30, 3\ns_lshl2_add_u32 s34, s34, s3")
    A("s_and_b32 s35, s29, 1\ns_and_b32 s3, s30, 7\ns_lshl3_add_u32 s35, s35, s3")
    A(f"s_mul_i32 s3, s35, 7*28672\ns_add_u32 s3, s3, {GU}")
    A("s_add_u32 s44, s26, s3\ns_addc_u32 s45, s27, 0\ns_and_b32 s45, s45, 0xffff\ns_mov_b32 s46, 5*28672\ns_mov_b32 s47, 0x20000")
    A("s_add_u32 s48, s44, 5*28672\ns_addc_u32 s49, s45, 0\ns_mov_b32 s50, 2*28672\ns_mov_b32 s51, 0x20000")
    A("s_mul_i32 s58, s28, 7168")
    for a in range(1, 4):
        A(f"s_add_u32 s3, s28, {a}\ns_and_b32 s3, s3, 3\ns_mul_i32 s3, s3, 12288\ns_add_u32 s3, s3, {L_MERGE+(a-1)*4096}")
        A(f"v_add_u32 v{5+a}, s3, v1")
    A(f"s_mul_i32 s3, s28, 12288\ns_add_u32 s3, s3, {L_MERGE}\nv_add_u32 v9, s3, v1")
    for a in range(1, 4):
        for q in range(4):
            A(f"ds_write_b128 v{5+a}, {vr(O0+16*a+4*q,4)} offset:{1024*q}")
    for t in range(3):
        dma_tile(A, t, 44, "dw")
    A("v_and_b32 v2, 7, v0\nv_mul_u32_u24 v14, 928, v2\nv_bfe_u32 v3, v0, 3, 2\nv_mul_u32_u24 v3, 56, v3")
    A(f"s_mul_i32 s3, s28, 224\ns_add_u32 s3, s3, {L_O}")
    A("v_lshrrev_b32 v15, 5, v0\nv_lshl_add_u32 v3, v15, 3, v3\nv_add3_u32 v2, v14, v3, s3")
    A(f"v_add_u32 v3, 48, v2\nv_mov_b32 v222, {L_DUMMY}\nv_cmp_eq_u32 vcc, 0, v15\nv_cndmask_b32 v3, v222, v3, vcc")
    A(f"v_lshrrev_b32 v15, 4, v0\nv_lshl_add_u32 v14, v15, 4, v14\nv_add_u32 v14, {L_O}, v14")
    A("s_waitcnt lgkmcnt(0)\ns_barrier")
    for a in range(1, 4):
        for q in range(4):
            A(f"ds_read_b128 {vr(O0+16*a+4*q,4)}, v9 offset:{4096*(a-1)+1024*q}")
    for a in range(1, 4):
        for r in range(16):
            A(f"v_add_f32 v{O0+r}, v{O0+r}, v{O0+16*a+r}")
    A(f"v_mov_b32 v222, v{O0+12}\nv_mov_b32 v223, v{O0+12}")
    A("v_permlane32_swap_b32 v222, v223")
    A("v_rcp_f32 v222, v223")
    for r in range(16):
        A(f"v_mul_f32 v{O0+r}, v222, v{O0+r}")
    for r in range(8):
        A(f"v_cvt_pk_bf16_f32 v{O0+16+r}, v{O0+2*r}, v{O0+2*r+1}")
    for g in range(3):
        A(f"ds_write_b64 v2, {vr(O0+16+2*g,2)} offset:{16*g}")
    A(f"ds_write_b64 v3, {vr(O0+22,2)}")
    A("s_waitcnt lgkmcnt(0)\ns_barrier")
    A.stamp("merged")
    BF = O0 + 8
    for k in range(14):
        A(f"ds_read_b128 {vr(BF+4*k,4)}, v14 offset:{64*k}")
    for t in range(3, 5):
        dma_tile(A, t, 44, "dw")
    acc = [O0, O0 + 4] + [Q0 + 8 + 4 * i for i in range(5)]
    for nt in range(7):
        A(f"v_lshlrev_b32 v{acc[nt]}, 16, v{X0+2*nt}\nv_and_b32 v{acc[nt]+1}, 0xffff0000, v{X0+2*nt}")
        A(f"v_lshlrev_b32 v{acc[nt]+2}, 16, v{X0+2*nt+1}\nv_and_b32 v{acc[nt]+3}, 0xffff0000, v{X0+2*nt+1}")
    A("v_mov_b32 v222, 0\nv_mov_b32 v223, 0")

    def stats(nt):
        o = []
        for r in range(4):
            o.append(f"v_add_f32 v222, v222, v{acc[nt]+r}")
            o.append(f"v_fmac_f32 v223, v{acc[nt]+r}, v{acc[nt]+r}")
        return o
    for nt in range(7):
        fill = stats(nt - 1) if nt > 0 else []
        for k in range(14):
            A(f"v_mfma_f32_16x16x32_bf16 {vr(acc[nt],4)}, {wo_reg(14*nt+k)}, {vr(BF+4*k,4)}, {vr(acc[nt],4)}")
            if k >= 8 and fill:
                A(fill.pop(0)); A(fill.pop(0))
    for x in stats(6): A(x)
    A.stamp("cgemm")
    A("v_permlane32_swap_b32 v222, v223\nv_add_f32 v222, v222, v223\nv_mov_b32 v223, v222")
    A("v_permlane16_swap_b32 v222, v223\nv_add_f32 v222, v222, v223")
    A(f"v_and_b32 v2, 7, v0\nv_lshlrev_b32 v2, 5, v2\nv_add_u32 v2, {L_STAT}, v2")
    A("v_lshrrev_b32 v3, 5, v0\nv_lshl_add_u32 v3, v3, 4, v2\ns_lshl_b32 s3, s28, 2\nv_add_u32 v3, s3, v3")
    A("ds_write_b32 v3, v222")
    A("s_lshr_b32 s3, s33, 2\ns_mul_i32 s3, s3, 28\ns_mul_i32 s62, s28, 7\ns_add_u32 s3, s3, s62\ns_lshl_b32 s3, s3, 10")
    A(f"s_and_b32 s62, s33, 3\ns_lshl_b32 s62, s62, 7\ns_add_u32 s3, s3, s62\ns_add_u32 s3, s3, {HN+3072}")
    A("v_and_b32 v6, 7, v0\nv_lshlrev_b32 v6, 4, v6\nv_lshrrev_b32 v7, 5, v0\nv_lshl_add_u32 v6, v7, 9, v6")
    A("v_bfe_u32 v7, v0, 4, 1\nv_lshl_add_u32 v6, v7, 3, v6")
    A(f"v_bfe_u32 v7, v0, 3, 1\ns_mov_b32 s62, {HH-HN}\nv_mul_lo_u32 v8, v7, s62\nv_add3_u32 v6, v6, v8, s3")
    A("v_cmp_eq_u32 vcc, 0, v7")
    A("s_waitcnt lgkmcnt(0)\ns_barrier")
    A("ds_read_b128 v[8:11], v2\nds_read_b128 v[12:15], v2 offset:16")
    A("v_add_f32 v8, v8, v9\nv_add_f32 v10, v10, v11\nv_add_f32 v12, v12, v13\nv_add_f32 v14, v14, v15")
    A("v_add_f32 v8, v8, v10\nv_add_f32 v12, v12, v14")
    A(f"v_mul_f32 v8, {f32(1/448)}, v8\nv_mul_f32 v12, {f32(1/448)}, v12")
    A("v_fma_f32 v12, -v8, v8, v12\nv_max_f32 v12, 0, v12")
    A(f"v_add_f32 v12, {f32(1e-5)}, v12\nv_rsq_f32 v12, v12")
    A("v_cndmask_b32 v8, 0, v8, vcc\nv_cndmask_b32 v12, 1.0, v12, vcc")
    for nt in range(7):
        for r in range(4):
            A(f"v_sub_f32 v{acc[nt]+r}, v{acc[nt]+r}, v8")
        for r in range(4):
            A(f"v_mul_f32 v{acc[nt]+r}, v12, v{acc[nt]+r}")
        A(f"v_cvt_pk_bf16_f32 v{acc[nt]}, v{acc[nt]}, v{acc[nt]+1}\nv_cvt_pk_bf16_f32 v{acc[nt]+1}, v{acc[nt]+2}, v{acc[nt]+3}")
        A(f"global_store_dwordx2 v6, {vr(acc[nt],2)}, s[26:27] offset:{1024*nt-3072} sc1")
    A.stamp("hn_st")
    A(f"s_lshl2_add_u32 s3, s34, s28\ns_lshl_b32 s3, s3, 9\ns_add_u32 s3, s3, {F2}")
    A("v_and_b32 v8, 3, v0\nv_lshl_add_u32 v8, v8, 7, s3")
    A("s_waitcnt vmcnt(0)\ns_barrier")
    A(f"s_lshl_b32 s62, s33, 7\ns_add_u32 s62, s62, {F2}")
    A.set_flag(62)
    A.stamp("f2")


def we_reg(f):
    if f < 36:
        return vr(112 + 4 * f, 4, "a")
    return vr(176 + 4 * (f - 36), 4)


def phase_d(A):
    A("; ---- gate/up GEMM + GEGLU ----")
    A(f"s_lshl2_add_u32 s3, s34, s28\ns_mul_i32 s62, s3, 28*1024\ns_add_u32 s62, s62, {HN+4096}")
    A("s_add_u32 s36, s26, s62\ns_addc_u32 s37, s27, 0")
    A(f"s_mul_i32 s3, s3, 112\ns_mul_i32 s62, s35, 7\ns_add_u32 s3, s3, s62\ns_lshl_b32 s3, s3, 10\ns_add_u32 s3, s3, {ACT+3072}")
    A("s_add_u32 s38, s26, s3\ns_addc_u32 s39, s27, 0")
    A(f"s_min_u32 s3, s32, 6\ns_lshl2_add_u32 s3, s3, s28\ns_mul_i32 s3, s3, 56*1024\ns_add_u32 s3, s3, {WD+4096}")
    A("s_add_u32 s40, s26, s3\ns_addc_u32 s41, s27, 0")
    A("s_and_b32 s3, s28, 1\ns_lshl_b32 s3, s3, 8\ns_lshr_b32 s62, s28, 1\ns_lshl_b32 s62, s62, 10\ns_or_b32 s3, s3, s62")
    A("v_xor_b32 v2, s3, v1\nv_xor_b32 v3, 0x400, v2")
    A("v_add_u32 v4, 57344, v1\nv_add_u32 v5, 114688, v1")
    c0 = -2 * math.sqrt(2 / math.pi) * math.log2(math.e)
    A(f"s_mov_b32 s60, {f32(c0*0.044715)}\nv_mov_b32 v9, {f32(c0)}")
    A.poll(8, 26, 15)
    A("@reset")
    A.stamp("poll2")
    hs = Stream(A, 36)
    for s in range(28):
        o = []
        o.append(f"global_load_dwordx4 {vr(4*s,4,'a')}, v1, {hs.addr(s, o)} sc1")
        for x in o: A(x)
    ACC = [16, 32, 48, 64]
    AF, NAF = 80, 8
    TMP = 112
    OUT = 144
    order = [(t, s) for s in range(28) for t in (0, 1)] + [(t, s) for t in range(2, 7) for s in range(28)]
    slot = lambda t: t % 5

    def rd(n):
        t, s = order[n]
        off = slot(t) * 28672 + s * 1024
        base = [1, 4, 5][off // 57344]
        return f"ds_read_b128 {vr(AF+4*(n%NAF),4)}, v{base} offset:{off%57344}"

    def epi(t):
        a = ACC[t % 4]
        o = []
        ob = OUT + 4 * (t % 2)
        for half in range(2):
            rs = range(4 * half, 4 * half + 4)
            T = lambda k, r: TMP + 4 * k + (r & 3)
            for r in rs: o.append((1, f"v_mul_f32 v{T(0,r)}, v{a+r}, v{a+r}"))
            for r in rs: o.append((1, f"v_fma_f32 v{T(0,r)}, v{T(0,r)}, s60, v9"))
            for r in rs: o.append((1, f"v_mul_f32 v{T(0,r)}, v{a+r}, v{T(0,r)}"))
            for r in rs:
                o.append((2, f"v_exp_f32 v{T(0,r)}, v{T(0,r)}"))
                o.append((1, f"v_mul_f32 v{T(1,r)}, v{a+r}, v{a+8+r}"))
            for r in rs: o.append((1, f"v_add_f32 v{T(0,r)}, 1.0, v{T(0,r)}"))
            for r in rs: o.append((2, f"v_rcp_f32 v{T(0,r)}, v{T(0,r)}"))
            for r in rs: o.append((1, f"v_mul_f32 v{T(1,r)}, v{T(1,r)}, v{T(0,r)}"))
            o.append((1, f"v_cvt_pk_bf16_f32 v{ob+2*half}, v{T(1,0)}, v{T(1,1)}"))
            o.append((1, f"v_cvt_pk_bf16_f32 v{ob+2*half+1}, v{T(1,2)}, v{T(1,3)}"))
        o.append((2, f"global_store_dwordx4 v1, {vr(ob,4)}, s[38:39] offset:{1024*t-3072} sc1"))
        return o

    es = Stream(A, 40)
    wq = []
    for f in range(56):
        pre = []
        ad = es.addr(f & ~1, pre)
        wq.append(pre + [f"global_load_dwordx4 {we_reg(f)}, v{2+(f&1)}, {ad} sc1"])
    PF = NAF - 2
    for n in range(PF):
        A(rd(n))
    fill = []
    N = len(order)
    hold = 0
    for n in range(N):
        t, s = order[n]
        if n == 56:
            A("s_barrier")
            dma_tile(A, 0, 48, "dw2"); dma_tile(A, 1, 48, "dw2")
            fill += epi(0) + epi(1)
        if n + PF == 140:
            A("@wait dw2\ns_barrier")
        if n > 56 and s == 0:
            pend = epi(t - 1)
            if not fill: hold = 3
            fill += pend
        d = vr(ACC[t % 4], 16)
        if s == 0 and t >= 4:
            assert len(fill) <= 3 * len(epi(0)), "accumulator reused before its epilogue"
        A(f"v_mfma_f32_32x32x16_bf16 {d}, {vr(AF+4*(n%NAF),4)}, {vr(4*s,4,'a')}, {'0' if s == 0 else d}")
        if n % 2 == 1 and n + 2 < N:
            A(f"@waitreg {vr(AF+4*((n+2)%NAF),4)}")
        if n + PF < N:
            A(rd(n + PF))
        budget = 4
        if n > 60 and n % 2 == 0 and wq:
            for x in wq.pop(0): A(x)
            budget -= 1
        if hold:
            hold -= 1
            A("s_nop 1")
            continue
        while fill and budget >= fill[0][0]:
            c, x = fill.pop(0)
            A(x); budget -= c
    for c, x in fill + epi(6): A(x)
    for l in wq:
        for x in l: A(x)
    A.stamp("act_st")
    A(f"s_lshl4_add_u32 s62, s34, s35\ns_lshl_b32 s62, s62, 7\ns_lshl2_add_u32 s62, s28, s62\ns_add_u32 s62, s62, {F3}")
    A("s_waitcnt vmcnt(0)")
    A.set_flag(62, wave0_only=False)
    A.stamp("f3")
    A("s_cmp_eq_u32 s32, 7\ns_cbranch_scc1 L_done")


def phase_e(A):
    A("; ---- down projection + residual ----")
    A(f"s_lshr_b32 s3, s31, 1\ns_lshl2_add_u32 s3, s3, s28\ns_lshl_b32 s3, s3, 9\ns_and_b32 s62, s31, 1\ns_lshl3_add_u32 s3, s62, s3\ns_add_u32 s3, s3, {F3}")
    A("v_and_b32 v8, 3, v0\nv_bfe_u32 v9, v0, 2, 1\nv_lshlrev_b32 v9, 2, v9\nv_lshl_add_u32 v8, v8, 7, v9\nv_add_u32 v8, s3, v8")
    A(f"s_mul_i32 s3, s31, 224\ns_mul_i32 s62, s28, 28\ns_add_u32 s3, s3, s62\ns_lshl_b32 s3, s3, 10\ns_add_u32 s3, s3, {ACT+4096}")
    A("s_add_u32 s36, s26, s3\ns_addc_u32 s37, s27, 0")
    A.sadd64(38, 36, 112 * 1024)
    A(f"s_mul_i32 s3, s31, 56\ns_lshl2_add_u32 s62, s32, s28\ns_add_u32 s3, s3, s62\ns_lshl_b32 s3, s3, 10\ns_add_u32 s3, s3, {HH}")
    A("v_add_u32 v2, s3, v1\nv_add_u32 v3, 28672, v2")
    for x in range(1, 4):
        A(f"s_xor_b32 s3, s28, {x}\ns_mul_i32 s3, s3, 6144\ns_add_u32 s3, s3, {L_RED+(x-1)*2048}\nv_add_u32 v{9+x}, s3, v1")
    A(f"s_mul_i32 s3, s28, 6144\ns_add_u32 s3, s3, {L_RED}\nv_add_u32 v13, s3, v1")
    A("s_mul_i32 s3, s31, 64*896\ns_lshl_b32 s62, s62, 5\ns_add_u32 s3, s3, s62")
    A("v_and_b32 v14, 31, v0\nv_mul_u32_u24 v14, 896, v14\nv_lshrrev_b32 v9, 5, v0\nv_lshl_add_u32 v14, v9, 4, v14\nv_add_u32 v14, s3, v14")
    A("v_add_u32 v4, 32*896, v14")
    A.poll(8, 26, 15)
    A("@reset")
    A.stamp("poll3")
    ACC = 16
    HR = 80
    areg = [vr(4 * i, 4, "a") for i in range(28)] + [vr(88 + 4 * i, 4) for i in range(22)]
    NA = len(areg)
    st = [Stream(A, 36), Stream(A, 38)]

    def ld(n):
        o = []
        o.append(f"global_load_dwordx4 {areg[n%NA]}, v1, {st[n//28].addr(n%28, o)} sc1")
        for x in o: A(x)
    for n in range(NA):
        ld(n)
    sends = []
    for n in range(56):
        tt, s = n // 28, n % 28
        for b in range(2):
            d = vr(ACC + 32 * tt + 16 * b, 16)
            A(f"v_mfma_f32_32x32x16_bf16 {d}, {we_reg(2*s+b)}, {areg[n%NA]}, {'0' if s == 0 else d}")
        if n + NA < 56:
            ld(n + NA)
        if n == 8:
            A(f"global_load_dwordx4 {vr(HR,4)}, v2, s[26:27] sc1\nglobal_load_dwordx4 {vr(HR+4,4)}, v3, s[26:27] sc1")
        if n == 34:
            sends = [f"ds_write_b128 v{9+x}, {vr(ACC+8*x+4*q,4)} offset:{1024*q}" for x in range(1, 4) for q in range(2)]
        if sends:
            A(sends.pop(0))
    for x in range(1, 4):
        for q in range(2):
            A(f"ds_write_b128 v{9+x}, {vr(ACC+32+8*x+4*q,4)} offset:{24576+1024*q}")
    A.stamp("egemm")
    for tt in range(2):
        for r in range(4):
            A(f"v_lshlrev_b32 v{88+8*tt+2*r}, 16, v{HR+4*tt+r}\nv_and_b32 v{89+8*tt+2*r}, 0xffff0000, v{HR+4*tt+r}")
        for r in range(8):
            A(f"v_add_f32 v{ACC+32*tt+r}, v{ACC+32*tt+r}, v{88+8*tt+r}")
    A("s_waitcnt lgkmcnt(0)\ns_barrier")
    for tt in range(2):
        for x in range(1, 4):
            for q in range(2):
                A(f"ds_read_b128 {vr(ACC+32*tt+8*x+4*q,4)}, v13 offset:{24576*tt+2048*(x-1)+1024*q}")
    for tt in range(2):
        for x in range(1, 4):
            for r in range(8):
                A(f"v_add_f32 v{ACC+32*tt+r}, v{ACC+32*tt+r}, v{ACC+32*tt+8*x+r}")
        for r in range(4):
            A(f"v_cvt_pk_bf16_f32 v{104+4*tt+r}, v{ACC+32*tt+2*r}, v{ACC+32*tt+2*r+1}")
        A(f"global_store_dwordx4 v{14 if tt == 0 else 4}, {vr(104+4*tt,4)}, s[22:23]")
    A.stamp("out_st")
    A("L_done:")
    if A.opt.get("prof"):
        A("s_waitcnt vmcnt(0)")
        A.stamp("end")
        A(f"s_lshl2_add_u32 s3, s2, s28\ns_lshl_b32 s3, s3, 7\ns_add_u32 s3, s3, {STAMP}\nv_mov_b32 v2, s3")
        for i in range(A.nstamp):
            A(f"v_mov_b32 v3, s{70+i}\nglobal_store_dword v2, v3, s[26:27] offset:{4*i}")


HEADER = open("cdna_kernels/" + NAME + ".s.ref").read().split("; Override launch")[0]


def generate(opt=None):
    opt = opt if opt is not None else {}
    A = G(opt)
    if opt.get("prof"):
        for i in range(70, 102):
            A(f"s_mov_b32 s{i}, 0")
        A.stamp("start")
    phase_a(A)
    phase_b(A)
    phase_c(A)
    phase_d(A)
    phase_e(A)
    A("L_exit:\ns_endpgm")
    body, st = sched.process(A.L, verbose=opt.get("verbose"))
    tail, _ = sched.process(A.tail)
    B = Asm()
    B.L = body + tail + ["L_code_end:"]
    txt = HEADER
    txt += f"; @launch grid=(256,1,1) block=(256,1,1) lds={LDS_BYTES}\n"
    txt += '.amdgcn_target "amdgcn-amd-amdhsa--gfx950"\n.text\n'
    txt += f".globl {KNAME}\n.p2align 8\n.type {KNAME},@function\n{KNAME}:\n"
    txt += B.text()
    txt += '.section .rodata,"a"\n.p2align 6\n'
    txt += f""".amdhsa_kernel {KNAME}
  .amdhsa_next_free_vgpr 512
  .amdhsa_next_free_sgpr 102
  .amdhsa_accum_offset 256
  .amdhsa_group_segment_fixed_size 0
  .amdhsa_kernarg_size 96
  .amdhsa_user_sgpr_count 2
  .amdhsa_user_sgpr_kernarg_segment_ptr 1
  .amdhsa_system_sgpr_workgroup_id_x 1
.end_amdhsa_kernel
"""
    return txt, st


if __name__ == "__main__":
    opt = {}
    out = "cdna_kernels/" + NAME + ".s"
    for a in sys.argv[1:]:
        if a.startswith("-o="):
            out = a[3:]
        else:
            k, _, v = a.partition("=")
            opt[k] = int(v) if v else 1
    txt, st = generate(opt)
    open(out, "w").write(txt)
    print(out, st, len(txt), "bytes of text;", opt.get("stamps"))
```
